```python
import torch

def _softmax(x, axis=-1):
    return torch.softmax(x, dim=axis)
def _gelu(x):
    return torch.nn.functional.gelu(x, approximate="tanh")
def _silu(x):
    return torch.nn.functional.silu(x)
def _sigmoid(x):
    return torch.sigmoid(x)
def _layernorm(x, axis=-1, eps=1e-5):
    m = x.mean(dim=axis, keepdim=True)
    v = x.var(dim=axis, keepdim=True, unbiased=False)
    return (x - m) / torch.sqrt(v + eps)
def _scatter_add(tgt, idx, src, axis=0):
    return tgt.clone().index_add_(axis, idx, src)
def _segment_sum(src, seg, n):
    out = torch.zeros((n,) + src.shape[1:], dtype=src.dtype)
    return out.index_add_(0, seg, src)
def _pad(x, pw):
    flat = tuple(v for pair in reversed(pw) for v in pair)
    return torch.nn.functional.pad(x, flat)

kernel_name = 'sequential_preLN__sliding_local_dilated__swiglu_ffn__prompt'

def setup_inputs():

    _w = (lambda a: (lambda t: t.to(torch.bfloat16) if t.is_floating_point() else t)(torch.as_tensor(a)))
    def _A_setup():
        B, S, D = 1, 2048, 640
        return {
            "x": _w((lambda *s: torch.randn(*s, dtype=torch.bfloat16) * 0.05)(B, S, D)),
            "wqkv": _w((lambda *s: torch.randn(*s, dtype=torch.bfloat16) * 0.05)(D, 3 * D)),
            "wo": _w((lambda *s: torch.randn(*s, dtype=torch.bfloat16) * 0.05)(D, D)),
        }
    _A_in = _A_setup()

    def _B_setup():
        B, S, D, F = 1, 2048, 640, 1728
        return {
            "x": _w((lambda *s: torch.randn(*s, dtype=torch.bfloat16) * 0.05)(B, S, D)),
            "w_gate": _w((lambda *s: torch.randn(*s, dtype=torch.bfloat16) * 0.05)(D, F)),
            "w_up": _w((lambda *s: torch.randn(*s, dtype=torch.bfloat16) * 0.05)(D, F)),
            "w_down": _w((lambda *s: torch.randn(*s, dtype=torch.bfloat16) * 0.05)(F, D)),
        }
    _B_in = _B_setup()

    return {
        "A_x": _A_in["x"],
        "A_wqkv": _A_in["wqkv"],
        "A_wo": _A_in["wo"],
        "B_x": _B_in["x"],
        "B_w_gate": _B_in["w_gate"],
        "B_w_up": _B_in["w_up"],
        "B_w_down": _B_in["w_down"],
    }

def reference(A_x, A_wqkv, A_wo, B_x, B_w_gate, B_w_up, B_w_down):
    def _A_ref(x, wqkv, wo):
        B, S, D = x.shape
        H = 32; Dh = D // H
        W, dil = 8, 2
        qkv = (lambda x, *d: x.permute(*d))((x @ wqkv).reshape(B, S, 3, H, Dh), 2, 0, 3, 1, 4)
        q, k, v = qkv[0], qkv[1], qkv[2]
        scale = Dh ** -0.5
        pos = torch.arange(S)
        off = torch.arange(W) * dil
        idx = pos[:, None] - off[None, :]
        mask = idx >= 0
        idx_c = torch.where(mask, idx, 0).reshape(-1)
        kg = k[:, :, idx_c, :].reshape(B, H, S, W, Dh)
        vg = v[:, :, idx_c, :].reshape(B, H, S, W, Dh)
        logits = torch.einsum("bhsd,bhswd->bhsw", q, kg) * scale
        logits = torch.where(mask[None, None, :, :], logits, -1e9)
        attn = _softmax(logits, axis=-1)
        o = torch.einsum("bhsw,bhswd->bhsd", attn, vg)
        return (lambda x, *d: x.permute(*d))(o, 0, 2, 1, 3).reshape(B, S, D) @ wo

    def _B_ref(x, w_gate, w_up, w_down):
        g = _silu(x @ w_gate)
        u = x @ w_up
        return (g * u) @ w_down

    x = A_x
    h = x + _A_ref(_layernorm(x, axis=-1), A_wqkv, A_wo)
    h2 = h + _B_ref(_layernorm(h, axis=-1), B_w_gate, B_w_up, B_w_down)
    return h2
```

```python
import re

REG_RE = re.compile(r'^(-|abs\()?([vas])(\d+)\)?$')
RNG_RE = re.compile(r'^(-)?([vas])\[(\d+):(\d+)\]$')

def regs_of(op):
    op = op.strip()
    m = RNG_RE.match(op)
    if m: return [(m.group(2), i) for i in range(int(m.group(3)), int(m.group(4)) + 1)]
    m = REG_RE.match(op)
    if m: return [(m.group(2), int(m.group(3)))]
    if op == 'vcc': return [('s', 106), ('s', 107)]
    if op == 'vcc_lo': return [('s', 106)]
    if op == 'vcc_hi': return [('s', 107)]
    if op == 'exec': return [('x', 0)]
    if op == 'm0': return [('m', 0)]
    return []

TRANS = ('v_exp_f32', 'v_log_f32', 'v_rcp_f32', 'v_rsq_f32', 'v_sqrt_f32', 'v_sin_f32', 'v_cos_f32', 'v_rcp_iflag_f32')

class I:
    __slots__ = ('text', 'op', 'cls', 'defs', 'uses', 'srcc', 'states', 'dpp', 'wide_store', 'lds_dma')
    def __init__(self, text):
        self.text = text
        t = text.split(';')[0].strip()
        parts = t.split(None, 1)
        op = parts[0]; self.op = op
        rest = parts[1] if len(parts) > 1 else ''
        toks = [x.strip() for x in rest.split(',')]
        ops = []
        mods = []
        for k, x in enumerate(toks):
            sub = x.split()
            if not sub: continue
            ops.append(sub[0]); mods += sub[1:]
        self.defs = []; self.uses = []; self.srcc = []; self.states = 1
        self.dpp = ('_dpp' in op) or any(m.startswith(('row_', 'quad_perm', 'wave_')) for m in mods)
        self.wide_store = False; self.lds_dma = False
        R = regs_of
        if op == 's_nop':
            self.cls = 'nop'; self.states = int(ops[0], 0) + 1
        elif op.startswith('v_mfma'):
            self.cls = 'mfma'; self.defs = R(ops[0]); self.uses = R(ops[1]) + R(ops[2]); self.srcc = R(ops[3])
        elif op.startswith('v_cmp'):
            self.cls = 'valu'; self.defs = R(ops[0]); self.uses = sum((R(x) for x in ops[1:]), [])
            if op.startswith('v_cmpx'): self.defs += [('x', 0)]
        elif op.startswith(('v_readfirstlane', 'v_readlane')):
            self.cls = 'rdlane'; self.defs = R(ops[0]); self.uses = sum((R(x) for x in ops[1:]), [])
        elif op.startswith('v_permlane'):
            self.cls = 'permlane'; self.defs = R(ops[0]) + R(ops[1]); self.uses = list(self.defs)
        elif op.startswith('v_'):
            self.cls = 'valu'
            if op.split('_e')[0] in TRANS or op in TRANS: self.cls = 'trans'
            if op.startswith('v_dot'): self.cls = 'dot'
            self.defs = R(ops[0]); srcs = ops[1:]
            if op.startswith(('v_add_co', 'v_sub_co', 'v_addc_co', 'v_subb_co', 'v_mad_u64')):
                self.defs += R(ops[1]); srcs = ops[2:]
            self.uses = sum((R(x) for x in srcs), [])
            if op.startswith(('v_fmac', 'v_dot2c', 'v_pk_fmac', 'v_writelane')) or self.dpp: self.uses += R(ops[0])
            if op.startswith('v_cndmask') and len(ops) == 3: self.uses += R('vcc')
        elif op.startswith('buffer_load') or op.startswith('global_load'):
            self.cls = 'vmem'
            if 'lds' in mods:
                self.lds_dma = True; self.uses = sum((R(x) for x in ops), []) + [('m', 0)]
            else:
                self.defs = R(ops[0]); self.uses = sum((R(x) for x in ops[1:]), [])
        elif op.startswith(('buffer_store', 'global_store', 'buffer_atomic', 'global_atomic')):
            self.cls = 'vmem'; self.uses = sum((R(x) for x in ops), [])
            if 'x4' in op or 'x3' in op:
                self.wide_store = R(ops[0]) if op.startswith('buffer') else R(ops[1])
            if 'atomic' in op and 'sc0' in mods: self.defs = R(ops[0])
        elif op.startswith(('buffer_wbl2', 'buffer_inv')):
            self.cls = 'vmem'
        elif op.startswith('ds_read') or op.startswith('ds_bpermute') or op.startswith('ds_swizzle'):
            self.cls = 'ds'; self.defs = R(ops[0]); self.uses = sum((R(x) for x in ops[1:]), [])
        elif op.startswith('ds_'):
            self.cls = 'ds'; self.uses = sum((R(x) for x in ops), [])
        elif op.startswith(('s_load', 's_memtime', 's_memrealtime', 's_buffer_load')):
            self.cls = 'smem'; self.defs = R(ops[0]); self.uses = sum((R(x) for x in ops[1:]), [])
        elif op.startswith('s_'):
            self.cls = 'salu'
            if op.startswith(('s_cmp', 's_cbranch', 's_branch', 's_waitcnt', 's_barrier', 's_endpgm', 's_setprio', 's_sleep', 's_bitcmp')):
                self.uses = sum((R(x) for x in ops), [])
            else:
                self.defs = R(ops[0]); self.uses = sum((R(x) for x in ops[1:]), [])
                if 'saveexec' in op: self.defs += [('x', 0)]
        else:
            raise ValueError('unknown instr ' + text)

VALU_LIKE = ('valu', 'trans', 'dot', 'rdlane', 'permlane')

def need(p, c):
    n = 0
    pd = set(p.defs); cu = set(c.uses); cd = set(c.defs); cc = set(c.srcc)
    vec = lambda s: {r for r in s if r[0] in 'va'}
    sg = lambda s: {r for r in s if r[0] == 's'}
    if p.cls in VALU_LIKE:
        if c.cls == 'mfma' and vec(pd) & (cu | cc): n = max(n, 2)
        if c.cls == 'vmem' and sg(pd) & cu: n = max(n, 5)
        if c.cls in VALU_LIKE and sg(pd) & cu: n = max(n, 4 if c.cls == 'rdlane' else 2)
        if c.cls == 'rdlane' and vec(pd) & cu: n = max(n, 1)
        if c.dpp and vec(pd) & cu: n = max(n, 2)
        if c.cls == 'permlane' and vec(pd) & cu: n = max(n, 2)
        if p.cls == 'trans' and c.cls != 'trans' and vec(pd) & cu and c.cls in VALU_LIKE + ('mfma',): n = max(n, 1)
        if p.cls == 'dot' and vec(pd) & (cu | cd | cc):
            same_acc = c.op == p.op and not (vec(pd) & set(c.uses[:-len(c.defs)] if c.op.startswith('v_dot2c') else c.uses[:2]))
            if not same_acc: n = max(n, 3)
        if ('x', 0) in pd:
            if c.cls == 'mfma': n = max(n, 4)
            if c.dpp: n = max(n, 5)
            if c.cls in ('rdlane', 'permlane'): n = max(n, 4)
        if c.cls == 'salu' and sg(pd) & cu: n = max(n, 1)
    if p.cls == 'mfma':
        passes = 8 if '32x32' in p.op else 4
        big = {4: 8, 8: 12}[passes]
        if c.cls == 'mfma':
            if pd & cu: n = max(n, big)
            if pd & cc and pd != cc: n = max(n, {4: 6, 8: 10}[passes])
            if pd & cd and pd != cc: n = max(n, big)
        elif c.cls in VALU_LIKE + ('vmem', 'ds'):
            if pd & (cu | cd): n = max(n, big)
        if c.cls in VALU_LIKE and set(p.srcc) & cd: n = max(n, {4: 3, 8: 7}[passes])
    if p.cls == 'salu' and ('m', 0) in pd and c.lds_dma: n = max(n, 1)
    if p.wide_store and set(p.wide_store) & cd: n = max(n, 2 if c.cls in VALU_LIKE else 1)
    return n

class Asm:
    def __init__(self):
        self.lines = []; self.hist = []
        self.vm = []; self.lg = []
        self.dry = False
        self.sites = {}; self.site_ctr = 0; self.site_mode = None
        self.uid = 0
    def raw(self, s):
        if not self.dry: self.lines.append(s)
    def label(self, name=None, reset=True):
        if name is None:
            self.uid += 1; name = f'L{self.uid}'
        self.raw(name + ':')
        return name
    def newlabel(self, p='L'):
        self.uid += 1; return f'{p}_{self.uid}'
    def __call__(self, text, tag=None):
        for t in text.split('\n'):
            t = t.strip()
            if not t: continue
            if t.startswith(';'): self.raw('    ' + t); continue
            if t.endswith(':'): self.raw(t); continue
            ins = I(t)
            dist = 0; req = 0
            for p in reversed(self.hist[-24:]):
                r = need(p, ins) - dist
                if r > req: req = r
                dist += p.states
                if dist >= 20: break
            while req > 0:
                k = min(req, 16)
                nop = I(f's_nop {k-1}'); self.hist.append(nop); self.raw('    ' + nop.text); req -= k
            self.hist.append(ins); self.raw('    ' + t)
            if ins.cls == 'vmem': self.vm.append(tag)
            if ins.cls == 'ds': self.lg.append(tag)
            if ins.cls == 'smem': self.lg.append('SMEM')
    def _cnt(self, q, tags):
        if not isinstance(tags, (list, set)): tags = [tags]
        last = -1
        for i, t in enumerate(q):
            if t in tags: last = i
        return len(q) - 1 - last if last >= 0 else None
    def _site(self, n, mx):
        if self.site_mode == 'rec':
            k = self.site_ctr; self.site_ctr += 1
            if n is not None: self.sites[k] = min(self.sites.get(k, mx), n)
            else: self.sites.setdefault(k, mx)
            return self.sites[k]
        if self.site_mode == 'use':
            k = self.site_ctr; self.site_ctr += 1
            return self.sites[k]
        return n
    def wait(self, vm=None, lg=None, slack_vm=0):
        parts = []
        if vm is not None:
            n = 0 if vm == 0 else self._cnt(self.vm, vm)
            if n is not None: n = max(0, min(n - slack_vm, 63))
            n2 = self._site(n, 63)
            if n2 is not None and n2 < 63 or n2 == 63 and n is not None:
                parts.append(f'vmcnt({n2})')
            if n is not None or self.site_mode == 'use':
                k = n2 if self.site_mode == 'use' else n
                if k is not None: self.vm = self.vm[len(self.vm) - k:] if k < len(self.vm) and k > 0 else ([] if k == 0 else self.vm)
        if lg is not None:
            if lg == 0 or 'SMEM' in self.lg: n = 0
            else: n = self._cnt(self.lg, lg)
            if n is not None: n = min(n, 15)
            n2 = self._site(n, 15)
            if n2 is not None and (n is not None or n2 < 15):
                parts.append(f'lgkmcnt({n2})')
            k = n2 if self.site_mode == 'use' else n
            if k is not None: self.lg = self.lg[len(self.lg) - k:] if k < len(self.lg) and k > 0 else ([] if k == 0 else self.lg)
        if parts: self('s_waitcnt ' + ' '.join(parts))
    def loop(self, n_iter, body, head=None):
        save = (list(self.vm), list(self.lg), list(self.hist), self.uid)
        self.sites = {}
        self.dry = True; self.site_mode = 'rec'
        for it in range(n_iter):
            self.site_ctr = 0; self.uid = save[3]; body(it)
        self.vm, self.lg, self.hist = list(save[0]), list(save[1]), list(save[2])
        self.site_mode = 'use'
        tail_hist = None
        for it in range(n_iter):
            self.site_ctr = 0; self.uid = save[3]; body(it)
            if it == 0: tail_hist = list(self.hist)
        end = (list(self.vm), list(self.lg))
        self.dry = False
        self.vm, self.lg = list(save[0]), list(save[1])
        self.hist = list(save[2])
        lab = head or self.newlabel('LOOP')
        self.uid = save[3] if head else self.uid
        self._alt_hist = tail_hist
        self.raw(lab + ':')
        self.site_ctr = 0
        start = len(self.hist)
        self.cur_loop = lab
        body(0)
        chk = self.hist[start:]
        seq = chk[-24:] + chk[:24]
        base = len(chk[-24:])
        for i in range(base, len(seq)):
            dist = 0
            for p in reversed(seq[:i]):
                if need(p, seq[i]) > dist: raise RuntimeError(f'back-edge hazard {p.text} -> {seq[i].text}')
                dist += p.states
                if dist >= 20: break
        self.site_mode = None
        self.vm, self.lg = end
    def text(self): return '\n'.join(self.lines)

class Pool:
    def __init__(self, kind, lo, hi): self.kind = kind; self.next = lo; self.hi = hi; self.max = lo
    def alloc(self, n=1, align=1):
        if n >= 2: align = max(align, 2)
        b = (self.next + align - 1) // align * align
        assert b + n <= self.hi, f'out of {self.kind} regs'
        self.next = b + n; self.max = max(self.max, self.next)
        return b
    def mark(self): return self.next
    def release(self, m): self.next = m

def rr(k, b, n=1): return f'{k}{b}' if n == 1 else f'{k}[{b}:{b+n-1}]'
def V(b, n=1): return rr('v', b, n)
def A(b, n=1): return rr('a', b, n)
def S(b, n=1): return rr('s', b, n)
```

```python
import sys
sys.path.insert(0, 'gen')
from asmlib import *

NAME = 'sequential_preLN__sliding_local_dilated__swiglu_ffn__prompt'
WS_OP = 0; WS_HP = 0x280000; WS_GP = 0x500000; WS_WOP = 0xC00000; WS_WGUP = 0xD00000; WS_WDP = 0x1200000
WS_ST2 = 0x1500000; WS_CS = 0x1540000; WS_SIZE = 0x1600000
LOG2E = 1.4426950408889634
import struct
def f2u(x): return struct.unpack('<I', struct.pack('<f', x))[0]
def hx(x): return hex(x & 0xffffffff)

SRD_A, SRD_B, SRD_WS, SRD_R = 4, 8, 12, 36
P_X, P_WQKV, P_WO, P_BX, P_WG, P_WU, P_WD, P_OUT, P_DBG, P_WS = 16, 18, 20, 22, 24, 26, 28, 30, 32, 34
sW, sG, sM = 40, 41, 42

def srd(a, d, ptr, size):
    a(f's_mov_b32 s{d}, s{ptr}\ns_mov_b32 s{d+1}, s{ptr+1}\ns_mov_b32 s{d+2}, {hx(size)}\ns_mov_b32 s{d+3}, 0x20000')

def prologue(a, endlab):
    a(f's_cmp_ge_u32 s2, 256\ns_cbranch_scc1 {endlab}')
    if STAMP: a('s_memrealtime s[96:97]')
    stamp(a, 0)
    a('s_load_dwordx16 s[16:31], s[0:1], 0\ns_load_dwordx4 s[32:35], s[0:1], 64')
    a(f'v_lshrrev_b32 v1, 6, v0\nv_and_b32 v0, 63, v0\nv_readfirstlane_b32 s{sW}, v1')
    a(f's_and_b32 s{sG}, s2, 7\ns_lshl_b32 s{sG}, s{sG}, 1\ns_lshr_b32 s{sM}, s2, 7\ns_add_u32 s{sG}, s{sG}, s{sM}')
    a(f's_lshr_b32 s{sM}, s2, 3\ns_and_b32 s{sM}, s{sM}, 15')

STAMP = False
ROT = (3, 4)
WS_STAMP = 0x2000000
def stamp(a, i):
    if STAMP: a(f's_memtime s[{80+2*i}:{81+2*i}]')
def stamp_flush(a, kidx, n):
    if not STAMP: return
    lab = a.newlabel('SF')
    a(f's_memrealtime s[98:99]')
    a.wait(lg=0)
    a(f's_cmp_lg_u32 s{sW}, 0\ns_cbranch_scc1 {lab}')
    a(f's_mov_b32 s{SRD_WS}, s{P_WS}\ns_mov_b32 s{SRD_WS+1}, s{P_WS+1}\ns_mov_b32 s{SRD_WS+2}, 0x4000000\ns_mov_b32 s{SRD_WS+3}, 0x20000')
    a(f's_lshl_b32 s78, s2, 6\ns_add_u32 s78, s78, {hx(WS_STAMP + kidx*0x10000)}\nv_mov_b32 v1, 0\ns_mov_b64 exec, 1')
    for i in list(range(n)) + [8, 9]:
        a(f'v_mov_b32 v2, s{80+2*i}\nbuffer_store_dword v2, v1, s[{SRD_WS}:{SRD_WS+3}], s78 offen offset:{4*i}')
    a(f'{lab}:')

def mfma(d, x, y, c=None): return f'v_mfma_f32_16x16x32_bf16 {d}, {x}, {y}, {c or d}'

BUF = 45056; XW = 10240; WROW = 1088
ATT = 90112; ARS = 592; STAT = 139264; RPS = 45056
P1_LDS = 143360

def phase1(a, st=''):
    vp = Pool('v', 1, 256); ap = Pool('a', 0, 256); sp_ = Pool('s', 43, 78)
    sa = sp_.alloc; va = vp.alloc
    sRB, sHG, sT0, sKX, sKX2, sKW, sBW, sBR, sDl, sIt = [sa() for _ in range(10)]
    sEx = sa(2); t0, t1, t2, t3, sWB, sSl = [sa() for _ in range(6)]
    rU, rBlk, rSp, rStr, rBase, rA, rB, rMag, rDiv, rMat, rWo = [sa() for _ in range(11)]
    acc = [[va(4, 4) for T in range(5)] for jj in range(4)]
    g0 = va(4, 4); g1 = va(4, 4)
    vx0, vx1, vw, vtr, vtr3, vxr0, vxr1, vxg0, vxg1 = [va() for _ in range(9)]
    vwa = [va() for _ in range(4)]
    vt = [va() for _ in range(8)]; vq = [va() for _ in range(3)]
    XF = [[ap.alloc(4, 4) for _ in range(6)] for ks in range(2)]
    WF = [[ap.alloc(4, 4) for _ in range(4)] for ks in range(2)]
    a('; ---- P1 roles')
    a(f's_lshr_b32 s{sRB}, s{sM}, 3\ns_lshl_b32 s{t0}, s{sG}, 1\ns_add_u32 s{sRB}, s{sRB}, s{t0}\ns_and_b32 s{sHG}, s{sM}, 7\ns_lshl_b32 s{sT0}, s{sRB}, 6')
    a(f'''v_lshrrev_b32 v{vt[0]}, 3, v0
        s_lshl_b32 s{t0}, s{sW}, 3
        s_add_u32 s{t0}, s{t0}, s{sT0}
        s_sub_u32 s{t1}, s{t0}, 16
        s_add_u32 s{t0}, s{t0}, 16
        v_add_u32 v{vt[1]}, s{t1}, v{vt[0]}
        v_max_i32 v{vt[1]}, 0, v{vt[1]}
        v_add_u32 v{vt[2]}, s{t0}, v{vt[0]}
        s_and_b32 s{t2}, s{sW}, 1
        s_lshl_b32 s{t2}, s{t2}, 2
        v_lshrrev_b32 v{vt[3]}, 4, v0
        v_add_u32 v{vt[4]}, s{t2}, v{vt[3]}
        v_and_b32 v{vt[5]}, 7, v0
        v_xor_b32 v{vt[4]}, v{vt[4]}, v{vt[5]}
        v_lshlrev_b32 v{vt[4]}, 4, v{vt[4]}
        s_movk_i32 s{t3}, 1280
        v_mad_u32_u24 v{vx0}, v{vt[1]}, s{t3}, v{vt[4]}
        v_mad_u32_u24 v{vx1}, v{vt[2]}, s{t3}, v{vt[4]}''')
    a(f'''v_min_u32 v{vt[0]}, 59, v0
        v_cmp_lt_u32 vcc, 29, v{vt[0]}
        v_cndmask_b32 v{vt[1]}, 0, 1, vcc
        v_mul_u32_u24 v{vt[2]}, 30, v{vt[1]}
        v_sub_u32 v{vt[0]}, v{vt[0]}, v{vt[2]}
        v_mul_u32_u24 v{vt[2]}, 26, v{vt[0]}
        v_lshrrev_b32 v{vt[2]}, 8, v{vt[2]}
        v_mul_u32_u24 v{vt[4]}, 10, v{vt[2]}
        v_sub_u32 v{vt[0]}, v{vt[0]}, v{vt[4]}
        v_lshlrev_b32 v{vt[0]}, 4, v{vt[0]}
        v_mad_u32_u24 v{vt[0]}, v{vt[2]}, s{t3}, v{vt[0]}
        v_mul_u32_u24 v{vt[1]}, {8*3840}, v{vt[1]}
        s_mul_i32 s{t0}, s{sW}, 3840
        s_mul_i32 s{t1}, s{sHG}, 160
        s_add_u32 s{t0}, s{t0}, s{t1}
        v_add3_u32 v{vw}, v{vt[0]}, v{vt[1]}, s{t0}''')
    a(f's_cmp_eq_u32 s{sW}, 0\ns_cselect_b32 s{sEx}, 0xffffff00, -1\ns_mov_b32 s{sEx+1}, -1')
    a.wait(lg=0)
    stamp(a, 1)
    srd(a, SRD_A, P_X, 2048 * 1280); srd(a, SRD_B, P_WQKV, 640 * 3840); srd(a, SRD_WS, P_WS, WS_SIZE)

    def dma_pieces():
        lab = a.newlabel('X3')
        P = []
        P.append((f's_lshl_b32 s{t0}, s{sW}, 10\ns_add_u32 m0, s{sBW}, s{t0}',
                  f's_mov_b64 exec, s[{sEx}:{sEx+1}]\nbuffer_load_dwordx4 v{vx0}, s[{SRD_A}:{SRD_A+3}], s{sKX} offen lds\ns_mov_b64 exec, -1'))
        P.append(('s_add_u32 m0, m0, 4096', f'buffer_load_dwordx4 v{vx1}, s[{SRD_A}:{SRD_A+3}], s{sKX} offen lds'))
        P.append((f's_add_u32 m0, m0, 4096\ns_add_u32 s{sKX2}, s{sKX}, {32*1280}\ns_add_u32 s{sKX}, s{sKX}, 128',
                  f's_cmp_ge_u32 s{sW}, 2\ns_cbranch_scc1 {lab}\nbuffer_load_dwordx4 v{vx1}, s[{SRD_A}:{SRD_A+3}], s{sKX2} offen lds\n{lab}:'))
        for n in range(8):
            pre = f's_add_u32 m0, s{sWB}, s{sBW}' if n == 0 else f's_add_u32 m0, m0, {4*WROW}\ns_add_u32 s{sKW}, s{sKW}, {(4 if n % 2 == 1 else 12) * 3840}'
            post = f'\ns_add_u32 s{sKW}, s{sKW}, {12*3840}\ns_add_u32 s{sSl}, s{sSl}, 1\ns_cmp_eq_u32 s{sSl}, 10\ns_cselect_b32 s{sSl}, 0, s{sSl}\ns_cselect_b32 s{sKW}, 0, s{sKW}\ns_cselect_b32 s{sKX}, 0, s{sKX}' if n == 7 else ''
            P.append((pre, f'buffer_load_dwordx4 v{vw}, s[{SRD_B}:{SRD_B+3}], s{sKW} offen lds' + post))
        return P
    def dma_block():
        for pre, ld in dma_pieces(): a(pre); a(ld)
    a(f's_mul_i32 s{sWB}, s{sW}, {WROW}\ns_add_u32 s{sWB}, s{sWB}, {XW}')
    if ROT:
        a(f's_mul_i32 s{t0}, s{sRB}, {ROT[0]}\ns_mul_i32 s{t1}, s{sHG}, {ROT[1]}\ns_add_u32 s{t0}, s{t0}, s{t1}\ns_mul_i32 s{t1}, s{t0}, 205\ns_lshr_b32 s{t1}, s{t1}, 11\ns_mul_i32 s{t1}, s{t1}, 10\ns_sub_u32 s{sSl}, s{t0}, s{t1}')
    else: a(f's_mov_b32 s{sSl}, 0')
    a(f's_lshl_b32 s{sKX}, s{sSl}, 7\ns_mul_i32 s{sKW}, s{sSl}, {64*3840}\ns_mov_b32 s{sBW}, 0')
    dma_block()
    a(f's_mov_b32 s{sBW}, {BUF}')
    dma_block()
    a(f's_mov_b32 s{sBW}, {2*BUF}\ns_mov_b32 s{sBR}, 0\ns_mov_b32 s{sIt}, 0')
    ones = acc[0][0]
    for i in range(4): a(f'v_mov_b32 v{ones+i}, 0x3f803f80')
    l1 = a.newlabel('O1'); l2 = a.newlabel('O2')
    a(f'''v_lshrrev_b32 v{vt[0]}, 2, v0
        s_and_b32 s{t0}, s{sW}, 1
        s_lshl_b32 s{t0}, s{t0}, 4
        v_add_u32 v{vt[0]}, s{t0}, v{vt[0]}
        v_mul_u32_u24 v{vt[0]}, {WROW}, v{vt[0]}
        v_and_b32 v{vt[1]}, 3, v0
        v_lshlrev_b32 v{vt[1]}, 4, v{vt[1]}
        s_lshr_b32 s{t0}, s{sW}, 1
        s_mul_i32 s{t0}, s{t0}, {BUF}
        s_add_u32 s{t0}, s{t0}, {XW+1024}
        v_add3_u32 v{vt[0]}, v{vt[0]}, v{vt[1]}, s{t0}
        ds_write_b128 v{vt[0]}, v[{ones}:{ones+3}]
        s_cmp_ge_u32 s{sW}, 2
        s_cbranch_scc1 {l1}
        v_add_u32 v{vt[0]}, {2*BUF}, v{vt[0]}
        ds_write_b128 v{vt[0]}, v[{ones}:{ones+3}]
        {l1}:
        s_cmp_ge_u32 s{sW}, 3
        s_cbranch_scc1 {l2}
        s_mul_i32 s{t0}, s{sW}, {BUF}
        v_lshlrev_b32 v{vt[1]}, 4, v0
        v_add_u32 v{vt[1]}, s{t0}, v{vt[1]}
        s_mov_b64 exec, 0xff
        ds_write_b128 v{vt[1]}, v[{ones}:{ones+3}]
        s_mov_b64 exec, -1
        {l2}:''')
    a(f'''v_lshrrev_b32 v{vt[0]}, 5, v0
        v_lshlrev_b32 v{vt[0]}, 3, v{vt[0]}
        v_bfe_u32 v{vt[1]}, v0, 2, 2
        v_add_u32 v{vt[0]}, v{vt[0]}, v{vt[1]}
        v_mul_u32_u24 v{vt[0]}, {WROW}, v{vt[0]}
        v_and_b32 v{vt[1]}, 3, v0
        v_lshlrev_b32 v{vt[1]}, 3, v{vt[1]}
        v_add3_u32 v{vt[0]}, v{vt[0]}, v{vt[1]}, s{sBR}
        v_bfe_u32 v{vt[1]}, v0, 4, 1
        s_lshl_b32 s{t0}, s{sW}, 7
        s_add_u32 s{t0}, s{t0}, {XW}
        s_movk_i32 s{t1}, 480
        v_mad_u32_u24 v{vtr}, v{vt[1]}, s{t1}, v{vt[0]}
        v_add_u32 v{vtr}, s{t0}, v{vtr}
        s_cmp_eq_u32 s{sW}, 3
        s_cselect_b32 s{t1}, 32, s{t1}
        s_cselect_b32 s{t0}, {XW+928}, s{t0}
        v_mad_u32_u24 v{vtr3}, v{vt[1]}, s{t1}, v{vt[0]}
        v_add_u32 v{vtr3}, s{t0}, v{vtr3}
        v_and_b32 v{vt[5]}, 15, v0
        v_lshrrev_b32 v{vt[0]}, 1, v{vt[5]}
        v_xor_b32 v{vt[0]}, v{vt[0]}, v{vt[3]}
        v_lshlrev_b32 v{vt[0]}, 4, v{vt[0]}
        v_lshl_add_u32 v{vxr0}, v{vt[5]}, 7, v{vt[0]}
        v_xor_b32 v{vxr1}, 64, v{vxr0}
        s_lshl_b32 s{t0}, s{sW}, 11
        s_add_u32 s{t0}, s{t0}, 2048
        v_add_u32 v{vxg0}, s{t0}, v{vxr0}
        v_add_u32 v{vxg1}, s{t0}, v{vxr1}''')
    a(f'v_mul_u32_u24 v{vt[6]}, {ARS}, v{vt[5]}\nv_add_u32 v{vt[6]}, {ATT}, v{vt[6]}\nv_lshlrev_b32 v{vt[7]}, 2, v{vt[3]}')
    for jj in range(4):
        a(f'''s_lshl_b32 s{t0}, s{sW}, 2
            s_add_u32 s{t0}, s{t0}, {jj}
            s_mul_i32 s{t1}, s{t0}, 205
            s_lshr_b32 s{t1}, s{t1}, 10
            s_mul_i32 s{t2}, s{t1}, 5
            s_sub_u32 s{t0}, s{t0}, s{t2}
            s_lshl_b32 s{t0}, s{t0}, 4
            s_mul_i32 s{t1}, s{t1}, 192
            v_add_u32 v{vt[0]}, s{t0}, v{vt[7]}
            v_mul_u32_u24 v{vt[1]}, 205, v{vt[0]}
            v_lshrrev_b32 v{vt[1]}, 12, v{vt[1]}
            v_lshlrev_b32 v{vt[1]}, 3, v{vt[1]}
            v_lshl_add_u32 v{vt[0]}, v{vt[0]}, 1, v{vt[1]}
            v_add3_u32 v{vwa[jj]}, v{vt[0]}, v{vt[6]}, s{t1}''')
    lB = a.newlabel('RB'); lC = a.newlabel('RC'); lD = a.newlabel('RD')
    a(f'''s_lshl_b32 s{rU}, s2, 2
        s_add_u32 s{rU}, s{rU}, s{sW}
        s_mov_b32 s{rWo}, 0
        s_mov_b32 s{rMat}, 0
        s_mov_b32 s{SRD_R+2}, {640*3456}
        s_mov_b32 s{SRD_R+3}, 0x20000
        s_movk_i32 s{rStr}, 1280
        s_movk_i32 s{rB}, 5120
        s_movk_i32 s{rMag}, 205
        s_mov_b32 s{rDiv}, 5
        s_cmp_ge_u32 s{rU}, 540
        s_cbranch_scc1 {lB}
        s_cmp_ge_u32 s{rU}, 270
        s_cselect_b32 s{rMat}, 1, 0
        s_cselect_b32 s{SRD_R}, s{P_WU}, s{P_WG}
        s_cselect_b32 s{SRD_R+1}, s{P_WU+1}, s{P_WG+1}
        s_cselect_b32 s{t0}, 270, 0
        s_sub_u32 s{t0}, s{rU}, s{t0}
        s_mul_i32 s{rBlk}, s{t0}, 205
        s_lshr_b32 s{rBlk}, s{rBlk}, 11
        s_mul_i32 s{t1}, s{rBlk}, 10
        s_sub_u32 s{rSp}, s{t0}, s{t1}
        s_movk_i32 s{rStr}, 3456
        s_mul_i32 s{rBase}, s{rMat}, 7168
        s_add_u32 s{rBase}, s{rBase}, {hx(WS_WGUP)}
        s_mov_b32 s{rA}, 286720
        s_movk_i32 s{rB}, 14336
        s_movk_i32 s{rMag}, 147
        s_mov_b32 s{rDiv}, 7
        s_branch {lD}
        {lB}:
        s_cmp_ge_u32 s{rU}, 810
        s_cbranch_scc1 {lC}
        s_sub_u32 s{t0}, s{rU}, 540
        s_mul_i32 s{rBlk}, s{t0}, 152
        s_lshr_b32 s{rBlk}, s{rBlk}, 12
        s_mul_i32 s{t1}, s{rBlk}, 27
        s_sub_u32 s{rSp}, s{t0}, s{t1}
        s_mov_b32 s{SRD_R}, s{P_WD}
        s_mov_b32 s{SRD_R+1}, s{P_WD+1}
        s_mov_b32 s{rBase}, {hx(WS_WDP)}
        s_mov_b32 s{rA}, 276480
        s_branch {lD}
        {lC}:
        s_sub_u32 s{t0}, s{rU}, 810
        s_mul_i32 s{rBlk}, s{t0}, 205
        s_lshr_b32 s{rBlk}, s{rBlk}, 11
        s_mul_i32 s{t1}, s{rBlk}, 10
        s_sub_u32 s{rSp}, s{t0}, s{t1}
        s_mov_b32 s{SRD_R}, s{P_WO}
        s_mov_b32 s{SRD_R+1}, s{P_WO+1}
        s_mov_b32 s{SRD_R+2}, {640*1280}
        s_mov_b32 s{rBase}, {hx(WS_WOP)}
        s_mov_b32 s{rA}, 102400
        s_mov_b32 s{rWo}, 1
        {lD}:''')
    a.wait(lg=0)
    for jj in range(4):
        for T in range(5):
            for i in range(4): a(f'v_mov_b32 v{acc[jj][T]+i}, 0')
    for i in range(4): a(f'v_mov_b32 v{g0+i}, 0\nv_mov_b32 v{g1+i}, 0')

    def reads(ks):
        vx = vxr0 if ks == 0 else vxr1; vg = vxg0 if ks == 0 else vxg1
        r = []
        def wr(jj):
            for h in range(2):
                r.append((f'ds_read_b64_tr_b16 {A(WF[ks][jj]+2*h, 2)}, v{vtr3 if jj == 3 else vtr} offset:{ks*16*WROW + h*4*WROW + jj*32}', ('W', ks, jj)))
        wr(0)
        for T in range(5): r.append((f'ds_read_b128 {A(XF[ks][T], 4)}, v{vx} offset:{T*2048}', ('X', ks, T)))
        wr(1)
        r.append((f'ds_read_b128 {A(XF[ks][5], 4)}, v{vg}', ('X', ks, 5)))
        wr(2); wr(3)
        return r
    def mms(ks):
        m = []
        for jj in range(4):
            for T in range(5):
                m.append((mfma(V(acc[jj][T], 4), A(WF[ks][jj], 4), A(XF[ks][T], 4)), [('W', ks, jj), ('X', ks, T)]))
            if jj == 0: m.append((mfma(V(g0, 4), A(XF[ks][0], 4), A(XF[ks][0], 4)), [('X', ks, 0)]))
            if jj == 1: m.append((mfma(V(g1, 4), A(XF[ks][5], 4), A(XF[ks][5], 4)), [('X', ks, 5)]))
        return m
    top = a.newlabel('P1L'); k1 = a.newlabel('K1'); k2 = a.newlabel('K2'); k3 = a.newlabel('K3'); rl = a.newlabel('RL'); rw = a.newlabel('RW'); rx = a.newlabel('RX')
    a(f'{top}:')
    a(f's_waitcnt vmcnt(10)\ns_barrier')
    if STAMP:
        ls = a.newlabel('ST')
        a(f's_cmp_lg_u32 s{sIt}, 0\ns_cbranch_scc1 {ls}\ns_memtime s[84:85]\ns_waitcnt lgkmcnt(0)\n{ls}:'); a.lg = []
    for t, tag in reads(0): a(t, tag)
    a(f's_cmp_ge_u32 s{sIt}, 8\ns_cselect_b32 s{SRD_A+2}, 0, s{SRD_A+2}\ns_cselect_b32 s{SRD_B+2}, 0, s{SRD_B+2}')
    r1 = reads(1)
    dp = dma_pieces()
    upd = [f'v_add_u32 v{r}, s{sDl}, v{r}' for r in (vtr, vtr3, vxr0, vxr1, vxg0, vxg1)]
    allm = mms(0) + mms(1)
    for i, (t, tags) in enumerate(allm):
        if i % 4 == 0 and dp: a(dp[0][0])
        a.wait(lg=tags); a(t)
        if i % 4 == 0 and dp: a(dp.pop(0)[1])
        elif r1:
            tt, tag = r1.pop(0); a(tt, tag)
        elif i >= 30 and upd: a(upd.pop(0))
        if i == 24: a(f's_mov_b32 s{sDl}, {BUF}\ns_cmp_eq_u32 s{sBR}, {2*BUF}\ns_cselect_b32 s{sDl}, {hx(-2*BUF)}, s{sDl}\ns_add_u32 s{sIt}, s{sIt}, 1')
    assert not dp and not r1 and not upd
    a(f's_mov_b32 s{sBW}, s{sBR}\ns_add_u32 s{sBR}, s{sBR}, s{sDl}')
    a(f's_cmp_lt_u32 s{sIt}, 10\ns_cbranch_scc1 {top}')
    a.vm = []; a.lg = []
    stamp(a, 3)
    e1 = a.newlabel('E1')
    a(f'''v_and_b32 v{vt[0]}, 3, v0
        v_lshlrev_b32 v{vt[1]}, 3, v{vt[5]}
        v_add_u32 v{vt[1]}, {STAT}, v{vt[1]}
        s_lshl_b32 s{t0}, s{sW}, 7
        v_add_u32 v{vt[2]}, s{t0}, v{vt[1]}
        v_cmp_eq_u32 vcc, 1, v{vt[0]}
        v_cmp_eq_u32 s[{sEx}:{sEx+1}], 2, v{vt[0]}
        v_cndmask_b32 v{g0}, v{g0}, v{g0+1}, vcc
        v_cndmask_b32 v{g1}, v{g1}, v{g1+1}, vcc
        v_cmp_eq_u32 vcc, 3, v{vt[0]}
        v_cndmask_b32 v{g0}, v{g0}, v{g0+2}, s[{sEx}:{sEx+1}]
        v_cndmask_b32 v{g1}, v{g1}, v{g1+2}, s[{sEx}:{sEx+1}]
        v_cndmask_b32 v{g0}, v{g0}, v{g0+3}, vcc
        v_cndmask_b32 v{g1}, v{g1}, v{g1+3}, vcc
        s_mov_b32 exec_lo, 0x00f0000f
        s_mov_b32 exec_hi, 0xf0000f00
        ds_write_b32 v{vt[1]}, v{g0} offset:4
        ds_write_b32 v{vt[2]}, v{g1} offset:132
        s_mov_b64 exec, -1
        s_cmp_lg_u32 s{sW}, 3
        s_cbranch_scc1 {e1}''')
    for T in range(5): a(f'ds_write_b32 v{vt[1]}, v{acc[3][T]} offset:{T*128}')
    a(f'{e1}:')
    a('s_waitcnt vmcnt(0) lgkmcnt(0)\ns_barrier'); a.lg = []
    a(f's_cmp_ge_u32 s{rU}, 910\ns_cbranch_scc1 {k3}')
    a(f'''v_lshrrev_b32 v{vq[0]}, 3, v0
        v_and_b32 v{vq[1]}, 3, v{vq[0]}
        v_lshrrev_b32 v{vq[0]}, 2, v{vq[0]}
        v_mul_u32_u24 v{vq[1]}, s{rStr}, v{vq[1]}
        v_and_b32 v{vq[2]}, 7, v0
        v_lshlrev_b32 v{vq[2]}, 4, v{vq[2]}
        s_lshl_b32 s{t0}, s{rBlk}, 7
        v_add3_u32 v{vq[1]}, v{vq[1]}, v{vq[2]}, s{t0}
        s_lshl_b32 s{t0}, s{sW}, 13
        s_add_u32 m0, s{t0}, {RPS}
        s_mov_b32 s{sKX}, 0
        {rl}:
        s_lshr_b32 s{t0}, s{sKX}, 2
        s_lshl_b32 s{t0}, s{t0}, 5
        s_and_b32 s{t1}, s{sKX}, 3
        s_lshl_b32 s{t1}, s{t1}, 2
        s_add_u32 s{t0}, s{t0}, s{t1}
        s_lshl_b32 s{t1}, s{rSp}, 6
        s_add_u32 s{t0}, s{t0}, s{t1}
        s_mov_b32 s{t1}, 16
        s_cmp_eq_u32 s{rWo}, 0
        s_cbranch_scc1 {rw}
        s_lshl_b32 s{t0}, s{rSp}, 3
        s_add_u32 s{t0}, s{t0}, s{sKX}
        s_mul_i32 s{t1}, s{t0}, 205
        s_lshr_b32 s{t1}, s{t1}, 10
        s_mul_i32 s{t2}, s{t1}, 5
        s_sub_u32 s{t0}, s{t0}, s{t2}
        s_lshr_b32 s{t2}, s{t0}, 1
        s_mul_i32 s{t2}, s{t2}, 20
        s_and_b32 s{t3}, s{t0}, 1
        s_lshl_b32 s{t3}, s{t3}, 3
        s_add_u32 s{t2}, s{t2}, s{t3}
        s_mul_i32 s{t1}, s{t1}, 40
        s_cmp_eq_u32 s{t0}, 4
        s_cselect_b32 s{t2}, 16, s{t2}
        s_add_u32 s{t0}, s{t1}, s{t2}
        s_cmp_eq_u32 s{t2}, 16
        s_cselect_b32 s{t1}, 20, 4
        {rw}:
        s_mul_i32 s{t0}, s{t0}, s{rStr}
        s_mul_i32 s{t1}, s{t1}, s{rStr}
        v_mad_u32_u24 v{vq[2]}, v{vq[0]}, s{t1}, v{vq[1]}
        buffer_load_dwordx4 v{vq[2]}, s[{SRD_R}:{SRD_R+3}], s{t0} offen lds
        s_add_u32 m0, m0, 1024
        s_add_u32 s{sKX}, s{sKX}, 1
        s_cmp_lt_u32 s{sKX}, 8
        s_cbranch_scc1 {rl}''')
    a(f'{k3}:')
    m_ = vp.mark()
    st_ = [va(2) for _ in range(5)]
    cs = [va(4, 4) for _ in range(4)]
    pk = [va(2) for _ in range(4)]
    for T in range(5): a(f'ds_read_b64 {V(st_[T], 2)}, v{vt[1]} offset:{T*128}', 'st')
    for jj in range(4):
        for i in range(4): a(f'v_mov_b32_dpp v{cs[jj]+i}, v{acc[jj][0]+i} row_newbcast:0 row_mask:0xf bank_mask:0xf')
    a.wait(lg=0)
    a(f's_mov_b32 s{t0}, {hx(f2u(-1.0/640))}\ns_mov_b32 s{t1}, {hx(f2u(1.0/640))}\ns_mov_b32 s{t2}, {hx(f2u(1e-5))}')
    for T in range(5):
        s0, s1 = st_[T], st_[T] + 1
        a(f'''v_mul_f32 v{s0}, s{t0}, v{s0}
            v_mul_f32 v{s1}, s{t1}, v{s1}
            v_fma_f32 v{s1}, -v{s0}, v{s0}, v{s1}
            v_max_f32 v{s1}, 0, v{s1}
            v_add_f32 v{s1}, s{t2}, v{s1}
            v_rsq_f32 v{s1}, v{s1}''')
    e2 = a.newlabel('E2')
    k = 0
    for jj in range(4):
        if jj == 3: a(f's_cmp_eq_u32 s{sW}, 3\ns_cbranch_scc1 {e2}')
        for T in range(5):
            c = acc[jj][T]; p = pk[k % 4]; k += 1
            for h in (0, 2):
                a(f'v_pk_fma_f32 {V(c+h,2)}, {V(cs[jj]+h,2)}, {V(st_[T],2)}, {V(c+h,2)} op_sel_hi:[1,0,1]')
            for h in (0, 2):
                a(f'v_pk_mul_f32 {V(c+h,2)}, {V(c+h,2)}, {V(st_[T],2)} op_sel:[0,1]')
            a(f'v_cvt_pk_bf16_f32 v{p}, v{c}, v{c+1}\nv_cvt_pk_bf16_f32 v{p+1}, v{c+2}, v{c+3}')
            a(f'ds_write_b64 v{vwa[jj]}, {V(p,2)} offset:{T*16*ARS}')
    a(f'{e2}:')
    a.wait(lg=0); a('s_barrier')
    stamp(a, 4)
    vp.release(1)
    q = va(10); K = [va(10) for _ in range(8)]; Vv = [va(10) for _ in range(8)]
    lg_ = [va() for _ in range(8)]; o = va(20, 4); vad = va(); vs = va(); mx = va(); pl = [va() for _ in range(8)]; ph = [va() for _ in range(8)]
    vo = va(); ob = va(12, 4)
    a(f'''v_mul_u32_u24 v{vad}, {ARS}, v0
        s_mul_i32 s{t0}, s{sW}, 48
        s_add_u32 s{t0}, s{t0}, {ATT + 2*ARS}
        v_add_u32 v{vad}, s{t0}, v{vad}''')
    def rd(reg, off, tag):
        a(f'ds_read_b128 {V(reg,4)}, v{vad} offset:{off}', tag)
        a(f'ds_read_b128 {V(reg+4,4)}, v{vad} offset:{off+16}', tag)
        a(f'ds_read_b64 {V(reg+8,2)}, v{vad} offset:{off+32}', tag)
    rd(q, 14 * ARS, 'q')
    for i in range(4): rd(K[i], (14 - 2 * i) * ARS + 192, ('k', i))
    a(f'v_add_u32 v{vs}, s{sT0}, v0')
    a(f'''v_lshrrev_b32 v{vo}, 4, v0
        v_mul_u32_u24 v{vo}, 20480, v{vo}
        v_and_b32 v{mx}, 15, v0
        v_lshl_add_u32 v{vo}, v{mx}, 4, v{vo}''')
    pend = [(K[i], (14 - 2 * i) * ARS + 192, ('k', i)) for i in range(4, 8)] + [(Vv[i], (14 - 2 * i) * ARS + 384, ('v', i)) for i in range(8)]
    for i in range(8):
        a.wait(lg=['q', ('k', i)])
        a(f'v_dot2_f32_bf16 v{lg_[i]}, v{q}, v{K[i]}, 0')
        for j in range(1, 10): a(f'v_dot2_f32_bf16 v{lg_[i]}, v{q+j}, v{K[i]+j}, v{lg_[i]}')
        rd(*pend.pop(0))
    while pend: rd(*pend.pop(0))
    a(f'v_mov_b32 v{vad}, {hx(f2u(-1e9 / (20 ** -0.5)))}')
    for i in range(1, 8):
        a(f'v_cmp_le_u32 vcc, {2*i}, v{vs}\nv_cndmask_b32 v{lg_[i]}, v{vad}, v{lg_[i]}, vcc')
    a(f'''v_max3_f32 v{mx}, v{lg_[0]}, v{lg_[1]}, v{lg_[2]}
        v_max3_f32 v{mx}, v{mx}, v{lg_[3]}, v{lg_[4]}
        v_max3_f32 v{mx}, v{mx}, v{lg_[5]}, v{lg_[6]}
        v_max_f32 v{mx}, v{mx}, v{lg_[7]}
        s_mov_b32 s{t0}, {hx(f2u(LOG2E * 20 ** -0.5))}''')
    for i in range(8): a(f'v_sub_f32 v{lg_[i]}, v{lg_[i]}, v{mx}')
    for i in range(8): a(f'v_mul_f32 v{lg_[i]}, s{t0}, v{lg_[i]}')
    for i in range(8): a(f'v_exp_f32 v{lg_[i]}, v{lg_[i]}')
    a(f'v_add_f32 v{mx}, v{lg_[0]}, v{lg_[1]}')
    for i in range(2, 8): a(f'v_add_f32 v{mx}, v{mx}, v{lg_[i]}')
    a(f'v_rcp_f32 v{mx}, v{mx}')
    for i in range(8): a(f'v_mul_f32 v{lg_[i]}, v{lg_[i]}, v{mx}')
    for i in range(8): a(f'v_cvt_pk_bf16_f32 v{pl[i]}, v{lg_[i]}, 0\nv_cvt_pk_bf16_f32 v{ph[i]}, 0, v{lg_[i]}')
    for i in range(8):
        a.wait(lg=('v', i))
        for j in range(10):
            for hh, pp in ((0, pl), (1, ph)):
                a(f'v_dot2_f32_bf16 v{o+2*j+hh}, v{Vv[i]+j}, v{pp[i]}, ' + ('0' if i == 0 else f'v{o+2*j+hh}'))
    for j in range(10): a(f'v_cvt_pk_bf16_f32 v{ob+j}, v{o+2*j}, v{o+2*j+1}')
    a(f'''s_lshl_b32 s{t0}, s{sHG}, 1
        s_lshr_b32 s{t1}, s{sW}, 1
        s_add_u32 s{t0}, s{t0}, s{t1}
        s_mul_i32 s{t0}, s{t0}, 1280
        s_mul_i32 s{t1}, s{sRB}, 81920
        s_add_u32 s{t0}, s{t0}, s{t1}
        s_and_b32 s{t1}, s{sW}, 1
        s_lshl_b32 s{t2}, s{t1}, 9
        s_add_u32 s{t2}, s{t2}, s{t0}
        s_lshl_b32 s{t1}, s{t1}, 3
        s_add_u32 s{t0}, s{t0}, s{t1}''')
    a(f'buffer_store_dwordx4 {V(ob,4)}, v{vo}, s[{SRD_WS}:{SRD_WS+3}], s{t2} offen {st}')
    a(f'buffer_store_dwordx4 {V(ob+4,4)}, v{vo}, s[{SRD_WS}:{SRD_WS+3}], s{t2} offen offset:256 {st}')
    a(f'buffer_store_dwordx2 {V(ob+8,2)}, v{vo}, s[{SRD_WS}:{SRD_WS+3}], s{t0} offen offset:1024 {st}')
    stamp(a, 5)
    rend = a.newlabel('REND'); rcs = a.newlabel('RCS')
    vp.release(1)
    F = [[va(4, 4) for n in range(4)] for ks in range(2)]
    C = [va(4, 4) for n in range(4)]; one = va(4, 4); vr = va(); vl = va(); vc = va()
    a(f's_cmp_ge_u32 s{rU}, 910\ns_cbranch_scc1 {rend}')
    a(f'''v_lshrrev_b32 v{vc}, 4, v0
        v_lshlrev_b32 v{vr}, 10, v{vc}
        v_bfe_u32 v{vl}, v0, 2, 2
        v_lshl_add_u32 v{vr}, v{vl}, 7, v{vr}
        v_and_b32 v{vl}, 3, v0
        v_lshl_add_u32 v{vr}, v{vl}, 3, v{vr}
        s_lshl_b32 s{t0}, s{sW}, 13
        s_add_u32 s{t0}, s{t0}, {RPS}
        v_add_u32 v{vr}, s{t0}, v{vr}
        v_lshlrev_b32 v{vl}, 4, v0
        v_lshlrev_b32 v{vc}, 4, v{vc}
        s_waitcnt vmcnt(3)''')
    for i in range(4): a(f'v_mov_b32 v{one+i}, 0x3f803f80')
    for ks in range(2):
        for n in range(4):
            for h in range(2):
                a(f'ds_read_b64_tr_b16 {V(F[ks][n]+2*h,2)}, v{vr} offset:{ks*4096+h*512+32*n}', ('f', ks, n))
    u0, u1 = sKX, sKX2
    cso = [sKW, sBW, sBR, sDl]
    a(f's_mul_i32 s{t3}, s{rSp}, s{rB}\ns_lshl_b32 s{t3}, s{t3}, 1\ns_add_u32 s{rBase}, s{rBase}, s{t3}')
    for n in range(4):
        a(f'''s_lshl_b32 s{t0}, s{rBlk}, 2
            s_add_u32 s{t0}, s{t0}, {n}
            s_mul_i32 s{t1}, s{t0}, s{rMag}
            s_lshr_b32 s{t1}, s{t1}, 10
            s_mul_i32 s{t2}, s{t1}, s{rDiv}
            s_sub_u32 s{t0}, s{t0}, s{t2}
            s_mul_i32 s{t2}, s{t1}, s{rA}
            s_lshl_b32 s{u0}, s{t0}, 10
            s_add_u32 s{u0}, s{u0}, s{t2}
            s_add_u32 s{u0}, s{u0}, s{rBase}
            s_add_u32 s{u1}, s{u0}, s{rB}
            s_mul_i32 s{t1}, s{t1}, 896
            s_lshl_b32 s{t0}, s{t0}, 6
            s_add_u32 s{cso[n]}, s{t0}, s{t1}''')
        a.wait(lg=('f', 0, n))
        a(f'buffer_store_dwordx4 {V(F[0][n],4)}, v{vl}, s[{SRD_WS}:{SRD_WS+3}], s{u0} offen {st}')
        a(mfma(V(C[n], 4), V(F[0][n], 4), V(one, 4), '0'))
        a.wait(lg=('f', 1, n))
        a(f'buffer_store_dwordx4 {V(F[1][n],4)}, v{vl}, s[{SRD_WS}:{SRD_WS+3}], s{u1} offen {st}')
        a(mfma(V(C[n], 4), V(F[1][n], 4), V(one, 4)))
    a(f'''s_cmp_ge_u32 s{rU}, 540
        s_cbranch_scc1 {rend}
        s_mul_i32 s{t0}, s{rSp}, 14336
        s_mul_i32 s{t1}, s{rMat}, 448
        s_add_u32 s{t0}, s{t0}, s{t1}
        v_add_u32 v{vc}, s{t0}, v{vc}
        v_add_u32 v{vc}, {hx(WS_CS)}, v{vc}
        s_mov_b32 exec_lo, 0x00010001
        s_mov_b32 exec_hi, 0x00010001''')
    for n in range(4): a(f'buffer_store_dwordx4 {V(C[n],4)}, v{vc}, s[{SRD_WS}:{SRD_WS+3}], s{cso[n]} offen {st}')
    a('s_mov_b64 exec, -1')
    a(f'{rend}:')
    stamp(a, 6)
    if STAMP: a('s_waitcnt vmcnt(0)')
    stamp(a, 7)
    return vp.max, ap.max

def kernel_text(name, body, nv, na):
    acc_off = (nv + 3) // 4 * 4
    return f'''.text
.globl {name}
.p2align 8
.type {name},@function
{name}:
{body}
.section .rodata,"a"
.p2align 6
.amdhsa_kernel {name}
  .amdhsa_next_free_vgpr {acc_off + na}
  .amdhsa_next_free_sgpr 102
  .amdhsa_accum_offset {acc_off}
  .amdhsa_group_segment_fixed_size 0
  .amdhsa_kernarg_size 80
  .amdhsa_user_sgpr_count 2
  .amdhsa_user_sgpr_kernarg_segment_ptr 1
  .amdhsa_system_sgpr_workgroup_id_x 1
.end_amdhsa_kernel
'''

def build_multi(phases):
    hdr = []; txt = []
    uid = 0
    for nm, fn, lds in phases:
        a = Asm(); a.uid = uid
        end = f'END_{nm}'
        prologue(a, end)
        nv, na = fn(a)
        stamp_flush(a, len(hdr), 8)
        a(f'{end}:\ns_endpgm')
        uid = a.uid + 1
        hdr.append(f'; @launch kernel={nm}_kernel grid=(256,1,1) block=(256,1,1) lds={lds}')
        txt.append(kernel_text(f'{nm}_kernel', a.text(), nv, na))
    return '\n'.join(hdr) + '\n.amdgcn_target "amdgcn-amd-amdhsa--gfx950"\n' + '\n'.join(txt)

if __name__ == '__main__':
    STAMP = 'stamp' in sys.argv
    for x in sys.argv:
        if x.startswith('rot='): ROT = tuple(map(int, x[4:].split(','))) if x[4:] != '0' else None
    s = build_multi([('p1', phase1, P1_LDS)])
    open('k.s', 'w').write(s)
    print(len(s.splitlines()), 'lines')
```
